```python
import torch

def _softmax(x, axis=-1):
    return torch.softmax(x, dim=axis)
def _gelu(x):
    return torch.nn.functional.gelu(x, approximate="tanh")
def _silu(x):
    return torch.nn.functional.silu(x)
def _sigmoid(x):
    return torch.sigmoid(x)
def _layernorm(x, axis=-1, eps=1e-5):
    m = x.mean(dim=axis, keepdim=True)
    v = x.var(dim=axis, keepdim=True, unbiased=False)
    return (x - m) / torch.sqrt(v + eps)
def _scatter_add(tgt, idx, src, axis=0):
    return tgt.clone().index_add_(axis, idx, src)
def _segment_sum(src, seg, n):
    out = torch.zeros((n,) + src.shape[1:], dtype=src.dtype)
    return out.index_add_(0, seg, src)
def _pad(x, pw):
    flat = tuple(v for pair in reversed(pw) for v in pair)
    return torch.nn.functional.pad(x, flat)

kernel_name = 'parallel_sum__compressed_kv_cla__glu_gated_glu__decode'

def setup_inputs():

    _w = (lambda a: (lambda t: t.to(torch.bfloat16) if t.is_floating_point() else t)(torch.as_tensor(a)))
    def _A_setup():
        B, H, Sq, Sk, D, M = 1, 32, 1, 8192, 128, 576
        Dc = 4 * D
        return {
            "x": _w((lambda *s: torch.randn(*s, dtype=torch.bfloat16) * 0.05)(B, Sq, M)),
            "c_kv": _w((lambda *s: torch.randn(*s, dtype=torch.bfloat16) * 1.6)(B, Sk, Dc)),
            "w_q": _w((lambda *s: torch.randn(*s, dtype=torch.bfloat16) * 3.2)(M, H, D) * (M ** -0.5)),
            "w_uk": _w((lambda *s: torch.randn(*s, dtype=torch.bfloat16) * 3.2)(Dc, H, D) * (Dc ** -0.5)),
            "w_uv": _w((lambda *s: torch.randn(*s, dtype=torch.bfloat16) * 1.6)(Dc, H, D) * (Dc ** -0.5)),
            "w_o": _w((lambda *s: torch.randn(*s, dtype=torch.bfloat16) * 1.6)(H, D, M) * ((H * D) ** -0.5)),
        }
    _A_in = _A_setup()

    def _B_setup():
        B, S, D, F = 1, 1, 576, 4608
        return {
            "x": _w((lambda *s: torch.randn(*s, dtype=torch.bfloat16) * 0.05)(B, S, D)),
            "w_gate": _w((lambda *s: torch.randn(*s, dtype=torch.bfloat16) * 0.2)(D, F)),
            "w_up": _w((lambda *s: torch.randn(*s, dtype=torch.bfloat16) * 0.05)(D, F)),
            "w_down": _w((lambda *s: torch.randn(*s, dtype=torch.bfloat16) * 0.05)(F, D)),
        }
    _B_in = _B_setup()

    return {
        "A_x": _A_in["x"],
        "A_c_kv": _A_in["c_kv"],
        "A_w_q": _A_in["w_q"],
        "A_w_uk": _A_in["w_uk"],
        "A_w_uv": _A_in["w_uv"],
        "A_w_o": _A_in["w_o"],
        "B_x": _B_in["x"],
        "B_w_gate": _B_in["w_gate"],
        "B_w_up": _B_in["w_up"],
        "B_w_down": _B_in["w_down"],
    }

def reference(A_x, A_c_kv, A_w_q, A_w_uk, A_w_uv, A_w_o, B_x, B_w_gate, B_w_up, B_w_down):
    def _A_ref(x, c_kv, w_q, w_uk, w_uv, w_o):
        B, Sq, M = x.shape[0], x.shape[1], x.shape[2]
        Sk = c_kv.shape[1]
        H, D = w_q.shape[1], w_q.shape[2]
        q = torch.einsum("bqm,mhd->bhqd", x, w_q)
        k = torch.einsum("bkc,chd->bhkd", c_kv, w_uk)
        v = torch.einsum("bkc,chd->bhkd", c_kv, w_uv)
        scores = torch.einsum("bhqd,bhkd->bhqk", q, k) * (D ** -0.5)
        off = Sk - Sq
        qi = torch.arange(Sq)[:, None]
        kj = torch.arange(Sk)[None, :]
        cmask = kj <= (qi + off)
        scores = torch.where(cmask[None, None], scores, -1e9)
        p = _softmax(scores, axis=-1)
        ctx = torch.einsum("bhqk,bhkd->bhqd", p, v)
        return torch.einsum("bhqd,hdm->bqm", ctx, w_o)

    def _B_ref(x, w_gate, w_up, w_down):
        g = torch.einsum("bsd,df->bsf", x, w_gate)
        u = torch.einsum("bsd,df->bsf", x, w_up)
        h = _sigmoid(g) * u
        return torch.einsum("bsf,fd->bsd", h, w_down)

    x = A_x
    xn = _layernorm(x, axis=-1)
    return x + _A_ref(xn, A_c_kv, A_w_q, A_w_uk, A_w_uv, A_w_o) + _B_ref(xn, B_w_gate, B_w_up, B_w_down)
```

```python
NAME = "parallel_sum__compressed_kv_cla__glu_gated_glu__decode"
HDR = open("cdna_kernels/" + NAME + ".s.ref").read().split("; Override launch")[0]
KARG = dict(x=0, ckv=8, wq=16, wuk=24, wuv=32, wo=40, bx=48, wg=56, wu=64, wd=72, out=80, dbg=88, ws=96)
NBYTES = dict(x=1152, ckv=8192 * 1024, wq=576 * 8192, wuk=512 * 8192, wuv=512 * 8192, wo=4096 * 1152,
              wg=576 * 9216, wu=576 * 9216, wd=4608 * 1152, out=1152, dbg=256, ws=256 << 20)
STAMP_OFF = 192 << 20

class Asm:
    def __init__(self):
        self.l = []
    def __call__(self, s=""):
        for line in s.split("\n"):
            line = line.strip()
            if not line:
                continue
            self.l.append(line if line.endswith(":") else "    " + line)
    def text(self):
        return "\n".join(self.l) + "\n"

def kernel_desc(name, vgpr, sgpr=102, accum=None):
    if accum is None:
        accum = min(256, (vgpr + 3) // 4 * 4)
    return f""".p2align 6
.amdhsa_kernel {name}
  .amdhsa_next_free_vgpr {vgpr}
  .amdhsa_next_free_sgpr {sgpr}
  .amdhsa_accum_offset {accum}
  .amdhsa_group_segment_fixed_size 0
  .amdhsa_kernarg_size 104
  .amdhsa_user_sgpr_count 2
  .amdhsa_user_sgpr_kernarg_segment_ptr 1
  .amdhsa_system_sgpr_workgroup_id_x 1
.end_amdhsa_kernel
"""

def single(body, grid, block, lds, vgpr, sgpr=102, accum=None):
    k = NAME + "_kernel"
    return (HDR + f"; @launch grid=({grid},1,1) block=({block},1,1) lds={lds}\n"
            + '.amdgcn_target "amdgcn-amd-amdhsa--gfx950"\n.text\n'
            + f".globl {k}\n.p2align 8\n.type {k},@function\n{k}:\n" + body
            + '.section .rodata,"a"\n' + kernel_desc(k, vgpr, sgpr, accum))

def multi(kernels, launches):
    s = HDR
    for n, g, b, lds in launches:
        s += f"; @launch kernel={n} grid=({g},1,1) block=({b},1,1) lds={lds}\n"
    s += '.amdgcn_target "amdgcn-amd-amdhsa--gfx950"\n.text\n'
    for n, body, v, sg, ac in kernels:
        s += f".globl {n}\n.p2align 8\n.type {n},@function\n{n}:\n" + body
    s += '.section .rodata,"a"\n'
    for n, body, v, sg, ac in kernels:
        s += kernel_desc(n, v, sg, ac)
    return s
```

```python
import re

_REG = re.compile(r"\b([vsa])\[(\d+):(\d+)\]|\b([vsa])(\d+)\b|\b(vcc|exec|m0)\b")
TRANS = ("v_exp_f32", "v_log_f32", "v_rcp_f32", "v_rsq_f32", "v_sqrt_f32", "v_sin_f32", "v_cos_f32")

def regs_of(op):
    out = []
    for m in _REG.finditer(op):
        if m.group(1):
            out += [(m.group(1), i) for i in range(int(m.group(2)), int(m.group(3)) + 1)]
        elif m.group(4):
            out.append((m.group(4), int(m.group(5))))
        else:
            out.append((m.group(6), 0))
    return out

def split_ops(rest):
    ops, depth, cur = [], 0, ""
    for ch in rest:
        if ch == "[": depth += 1
        if ch == "]": depth -= 1
        if ch == "," and depth == 0:
            ops.append(cur.strip()); cur = ""
        else:
            cur += ch
    if cur.strip(): ops.append(cur.strip())
    return ops

class Ins:
    def __init__(self, text):
        self.text = text
        t = text.split(";")[0].strip()
        self.mn, _, rest = t.partition(" ")
        self.ops = split_ops(rest)
        mn = self.mn
        o = [regs_of(x) for x in self.ops]
        flat = lambda l: [r for x in l for r in x]
        self.kind = "other"; self.w = []; self.r = []; self.srcc = []; self.data = []
        self.dpp = "row_" in t or "quad_perm" in t
        if mn.startswith("v_mfma"):
            self.kind = "mfma"; self.w = o[0]; self.r = o[1] + o[2]; self.srcc = o[3]
            self.passes = 8 if "32x32" in mn else 4
        elif mn.startswith("v_"):
            self.kind = "valu"
            if "swap" in mn:
                self.w = o[0] + o[1]; self.r = o[0] + o[1]
            else:
                self.w = list(o[0]); self.r = flat(o[1:])
                if mn.startswith(("v_fmac", "v_dot2c", "v_writelane")) or self.dpp or "d16" in mn: self.r += o[0]
                if "_co_" in mn: self.w += o[1]
                if mn.startswith("v_cndmask") and len(self.ops) == 3: self.r.append(("vcc", 0))
        elif mn.startswith("ds_"):
            self.kind = "ds"
            if mn.startswith(("ds_read", "ds_bpermute", "ds_permute", "ds_swizzle")):
                self.w = o[0]; self.r = flat(o[1:])
            else:
                self.r = flat(o)
        elif mn.startswith(("buffer_", "global_")):
            self.kind = "vmem"
            self.lds = bool(re.search(r"\blds\b", t))
            if "load" in mn and not self.lds:
                self.w = o[0]; self.r = flat(o[1:])
            else:
                self.r = flat(o)
                if "store" in mn and ("x3" in mn or "x4" in mn): self.data = o[0]
            if self.lds: self.r.append(("m0", 0))
        elif mn.startswith("s_"):
            self.kind = "salu"
            if mn.startswith(("s_load", "s_memtime", "s_memrealtime")): self.kind = "smem"
            if mn.startswith(("s_cmp", "s_bitcmp", "s_cbranch", "s_branch", "s_waitcnt", "s_nop", "s_barrier", "s_endpgm", "s_setprio", "s_sleep")):
                self.r = flat(o)
            else:
                self.w = o[0] if o else []; self.r = flat(o[1:])
                if "saveexec" in mn: self.w = self.w + [("exec", 0)]
        self.states = int(self.ops[0]) + 1 if mn == "s_nop" else 1

def check_hazards(lines):
    ins = [Ins(l.strip()) for l in lines if l.strip() and not l.strip().endswith(":") and not l.strip().startswith((".", ";"))]
    errs = []
    for i, c in enumerate(ins):
        dist = 0
        for j in range(i - 1, max(-1, i - 24), -1):
            p = ins[j]
            if p.mn in ("s_branch", "s_endpgm"): break
            need = 0
            pw, cr, cw = set(p.w), set(c.r), set(c.w)
            pv = {x for x in pw if x[0] in "va"}; ps = {x for x in pw if x[0] in ("s", "vcc")}
            if p.kind == "valu":
                if c.kind == "mfma" and pv & (cr | set(c.srcc)): need = max(need, 2)
                if c.kind == "valu" and c.dpp and pv & cr: need = max(need, 2)
                if c.kind == "valu" and "permlane" in c.mn and pv & cr: need = max(need, 2)
                if c.mn.startswith(("v_readlane", "v_readfirstlane")) and pv & cr: need = max(need, 1)
                if p.mn.startswith(TRANS) and c.kind in ("valu", "mfma") and pv & cr and not c.mn.startswith(TRANS): need = max(need, 1)
                if c.kind == "valu" and ps & cr: need = max(need, 4 if "lane" in c.mn and "first" not in c.mn else 2)
                if c.kind == "vmem" and ps & cr: need = max(need, 5)
            if p.kind == "mfma":
                big = 8 if p.passes == 4 else 12
                if c.kind == "mfma":
                    if pw & cr: need = max(need, big)
                    if pw & set(c.srcc) and not (p.w == c.srcc and p.mn == c.mn): need = max(need, big - 2)
                    if pw & cw and not (p.w == c.srcc and p.mn == c.mn): need = max(need, big - 2)
                elif c.kind in ("valu", "vmem", "ds") and pw & (cr | cw): need = max(need, big)
                if c.kind == "valu" and set(p.srcc) & cw: need = max(need, 3 if p.passes == 4 else 7)
            if p.kind == "salu" and ("m0", 0) in pw and c.kind == "vmem" and getattr(c, "lds", False): need = max(need, 1)
            if p.kind == "vmem" and p.data and c.kind != "salu" and set(p.data) & cw: need = max(need, 2)
            if dist < need:
                errs.append(f"need {need} have {dist}: [{p.text}] -> [{c.text}]")
            dist += p.states
    return errs

class E:
    def __init__(self):
        self.l = []; self.lg = []; self.vm = []
    def __call__(self, s=""):
        for line in s.split("\n"):
            line = line.strip()
            if not line: continue
            if line.endswith(":") or line.startswith((".", ";")):
                self.l.append(line if line.endswith(":") else "    " + line); continue
            ins = Ins(line)
            if ins.kind == "ds": self.lg.append(set(ins.w))
            elif ins.kind == "vmem": self.vm.append(set(ins.w))
            elif ins.mn == "s_waitcnt":
                m = re.search(r"lgkmcnt\((\d+)\)", line)
                if m: self.lg = self.lg[len(self.lg) - int(m.group(1)):] if int(m.group(1)) and int(m.group(1)) < len(self.lg) else ([] if int(m.group(1)) == 0 else self.lg)
                m = re.search(r"vmcnt\((\d+)\)", line)
                if m: self.vm = self.vm[len(self.vm) - int(m.group(1)):] if int(m.group(1)) and int(m.group(1)) < len(self.vm) else ([] if int(m.group(1)) == 0 else self.vm)
            self.l.append("    " + line)
    def need(self, *ops):
        want = set(r for o in ops for r in regs_of(o))
        parts = []
        for name, q, cap in (("vmcnt", self.vm, 63), ("lgkmcnt", self.lg, 15)):
            last = max((i for i, w in enumerate(q) if w & want), default=None)
            if last is not None:
                parts.append(f"{name}({min(cap, len(q) - 1 - last)})")
        if parts: self("s_waitcnt " + " ".join(parts))
    def forget(self):
        self.lg = []; self.vm = []
    def text(self):
        return "\n".join(self.l) + "\n"

def vr(a, n=1):
    return f"v{a}" if n == 1 else f"v[{a}:{a + n - 1}]"
def sr(a, n=1):
    return f"s{a}" if n == 1 else f"s[{a}:{a + n - 1}]"
```

```python
import sys, argparse, math, struct
from asmlib import *
from emit import *

H0 = 0x10000
H1 = 0x50000
HM = 0x60000
H3 = 0x200000
H2 = 0x300000
WS_USED = H2 + 128 * 49152
TAG_STEP = 0x9E3779B1
POLL_MAX = 1 << 16

CKV, CKV_S = 0, 1040
WQ = 66560
GU, GU_M, ROW = 84992, 38016, 1056
XN = 161024
HV = 162304
GUT, DN, DNT = 0, 10240, 48256
SLOT = 33792
WUV = 3 * SLOT
WOT = 4 * SLOT
QS = 151552
WSC = QS + 512
CTXC = WSC + 1024
LSUM = CTXC + 256
DUMMY = LSUM + 16
CTX = CTXC + 512
LDS_BYTES = 163840

P_X, P_CKV, P_WQ, P_WUK, P_WUV, P_WO, P_WG, P_WU, P_WD, P_OUT, P_WS = 4, 6, 8, 10, 12, 14, 18, 20, 22, 24, 28
SA, SB, SC, SW, SX = 32, 36, 40, 44, 48
TAG, HEAD, SL, RID, PEND, ITER = 52, 53, 54, 55, 56, 57
T0, T1, T2, T3 = 58, 59, 60, 61
MK = 62
STAMP0 = 64
M1, M2_, M3 = 96, 98, 100

def fbits(x):
    return struct.unpack("<I", struct.pack("<f", x))[0]

LOG2E = fbits(math.log2(math.e))
KAPPA = fbits(math.log2(math.e) / math.sqrt(128))

class G:
    def __init__(self, o):
        self.o = o
        self.e = E()
        self.n = 0

    def lab(self, s):
        self.n += 1
        return f"L_{s}_{self.n}"

    def srd(self, d, p, nbytes):
        self.e(f"""s_mov_b32 s{d}, s{p}
        s_mov_b32 s{d + 1}, s{p + 1}
        s_mov_b32 s{d + 2}, {nbytes}
        s_mov_b32 s{d + 3}, 0x20000""")

    def stamp(self, i):
        if self.o.diag:
            self.e(f"s_memrealtime {sr(STAMP0 + 2 * i, 2)}\ns_waitcnt lgkmcnt(0)")

    def bar(self):
        self.e("s_barrier")

    def allred(self, op, v, t):
        e = self.e
        for r in (8, 4, 2, 1):
            e(f"s_nop 1\n{op}_dpp v{v}, v{v}, v{v} row_ror:{r} row_mask:0xf bank_mask:0xf")
        self.xrow(op, v, t)

    def xrow(self, op, v, t):
        for w in (16, 32):
            self.e(f"v_mov_b32 v{t}, v{v}\ns_nop 1\nv_permlane{w}_swap_b32 v{v}, v{t}\n{op} v{v}, v{v}, v{t}")

    def bfround(self, v):
        self.e(f"v_cvt_pk_bf16_f32 v{v}, v{v}, v{v}\nv_lshlrev_b32 v{v}, 16, v{v}")

    def poll(self, groups, name):
        e = self.e
        top, done = self.lab(name + "_poll"), self.lab(name + "_done")
        e(f"s_mov_b32 s{PEND}, {(1 << len(groups)) - 1}\ns_mov_b32 s{ITER}, 0")
        n = sum(len(g) for g in groups)
        for g in groups:
            for ld, _ in g: e(ld)
        k = 0
        for gi, g in enumerate(groups):
            e(f"s_mov_b64 {sr(MK, 2)}, exec")
            for _, tr in g:
                k += 1
                e(f"s_waitcnt vmcnt({n - k})\nv_cmp_eq_u32 vcc, s{TAG}, v{tr}\ns_and_b64 {sr(MK, 2)}, {sr(MK, 2)}, vcc")
            e(f"s_cmp_eq_u64 {sr(MK, 2)}, exec\ns_cselect_b32 s{T3}, {1 << gi}, 0\ns_andn2_b32 s{PEND}, s{PEND}, s{T3}")
        e(f"s_cbranch_scc0 {done}")
        e(f"{top}:")
        for gi, g in enumerate(groups):
            sk = self.lab("sk")
            e(f"s_bitcmp1_b32 s{PEND}, {gi}\ns_cbranch_scc0 {sk}")
            for ld, _ in g: e(ld)
            e(f"{sk}:")
        e("s_waitcnt vmcnt(0)")
        for gi, g in enumerate(groups):
            e(f"s_mov_b64 {sr(MK, 2)}, exec")
            for _, tr in g:
                e(f"v_cmp_eq_u32 vcc, s{TAG}, v{tr}\ns_and_b64 {sr(MK, 2)}, {sr(MK, 2)}, vcc")
            e(f"s_cmp_eq_u64 {sr(MK, 2)}, exec\ns_cselect_b32 s{T3}, {1 << gi}, 0\ns_andn2_b32 s{PEND}, s{PEND}, s{T3}")
        e(f"""s_cbranch_scc0 {done}
        s_add_u32 s{ITER}, s{ITER}, 1
        s_cmp_lt_u32 s{ITER}, {POLL_MAX}
        s_cbranch_scc1 {top}
        {done}:""")
        e.forget()

    def dma(self, vaddr, srd, soff, flags="nt"):
        self.e(f"buffer_load_dwordx4 v{vaddr}, {sr(srd, 4)}, s{soff} offen {flags} lds")

    def dma_run(self, n, vaddr, srd, soff, sstep, lreg, lstep, flags="nt"):
        for _ in range(n):
            self.e(f"s_mov_b32 m0, s{lreg}\ns_add_u32 s{lreg}, s{lreg}, {lstep}")
            self.dma(vaddr, srd, soff, flags)
            self.e(f"s_add_u32 s{soff}, s{soff}, {sstep}")

    def sel3(self, dst, a, b, c):
        self.e(f"v_cndmask_b32 v{dst}, v{a}, v{b}, {sr(M1, 2)}\nv_cndmask_b32 v{dst}, v{dst}, v{c}, {sr(M2_, 2)}")

    def gemv36(self, jobs, xq, xp, depth=4):
        e = self.e
        def reads(j):
            acc, f, am, im, al, il, hs = j
            e(f"ds_read_b64_tr_b16 {vr(f, 2)}, v{am} offset:{im}")
            e(f"ds_read_b64_tr_b16 {vr(f + 2, 2)}, v{am} offset:{im + hs}")
            e(f"ds_read_b64_tr_b16 {vr(f + 4, 2)}, v{al} offset:{il}")
        for j in jobs[:depth]: reads(j)
        for i, j in enumerate(jobs):
            acc, f = j[0], j[1]
            e.need(vr(f, 6), vr(xq, 4), vr(xp, 2))
            e(f"v_mfma_f32_16x16x32_bf16 {vr(acc, 4)}, {vr(xq, 4)}, {vr(f, 4)}, 0")
            if i + depth < len(jobs): reads(jobs[i + depth])
            e(f"v_mfma_f32_16x16x32_bf16 {vr(acc, 4)}, {vr(xp, 4)}, {vr(f + 4, 4)}, {vr(acc, 4)}")

    def publish_out(self, acc0, stage, vaddr):
        e = self.e
        e("s_nop 7")
        for a in range(3):
            self.sel3(stage + a, acc0 + 4 * a, acc0 + 4 * (3 + a), acc0 + 4 * (6 + a))
        e(f"""s_lshl_b32 s{T0}, s2, 6
        s_add_u32 s{T0}, s{T0}, {H3}
        s_mov_b32 exec_hi, 0xffff
        buffer_store_dwordx4 {vr(stage, 4)}, v{vaddr}, {sr(SW, 4)}, s{T0} offen sc1
        s_mov_b32 exec_hi, -1""")

    def out_addr(self, v, t):
        self.e(f"""s_mul_i32 s{T0}, s3, 3
        v_add_u32 v{v}, s{T0}, v3
        v_lshrrev_b32 v{t}, 2, v2
        v_lshl_add_u32 v{v}, v{v}, 2, v{t}
        v_lshlrev_b32 v{v}, 14, v{v}
        v_lshl_add_u32 v{v}, v5, 1, v{v}""")

    def prologue(self):
        e = self.e
        self.stamp(0)
        e(f"""s_cmp_ge_u32 s2, 256
        s_cbranch_scc1 L_end
        s_load_dwordx16 s[4:19], s[0:1], 0
        s_load_dwordx8 s[20:27], s[0:1], 64
        s_load_dwordx2 s[28:29], s[0:1], 96
        v_lshrrev_b32 v7, 6, v0
        v_and_b32 v1, 63, v0
        v_readfirstlane_b32 s3, v7
        v_and_b32 v2, 15, v1
        v_lshrrev_b32 v3, 4, v1
        v_lshrrev_b32 v4, 2, v1
        v_and_b32 v5, 3, v1
        v_lshlrev_b32 v5, 3, v5
        v_lshlrev_b32 v6, 4, v1
        s_and_b32 s{HEAD}, s2, 31
        s_lshr_b32 s{SL}, s2, 5
        s_and_b32 s{RID}, s2, 127
        s_cmp_ge_u32 s3, 4
        s_cbranch_scc1 L_loader""")

    def compute_common(self):
        e = self.e
        e(f"""s_setprio 2
        v_lshlrev_b32 v7, 2, v1
        s_waitcnt lgkmcnt(0)
        s_load_dword s{TAG}, {sr(P_WS, 2)}, 0""")
        self.srd(SX, P_X, 1152)
        for i in range(5):
            e(f"buffer_load_dword v{8 + i}, v7, {sr(SX, 4)}, 0 offen offset:{256 * i}")
        self.srd(SW, P_WS, WS_USED if not self.o.diag else 256 << 20)
        self.srd(SA, P_WUK, NBYTES["wuk"])
        e(f"""v_cmp_eq_u32 {sr(M1, 2)}, 1, v3
        v_cmp_eq_u32 {sr(M2_, 2)}, 2, v3
        v_cmp_eq_u32 {sr(M3, 2)}, 3, v3""")
        e(f"""v_and_b32 v24, 7, v4
        s_lshl_b32 s{T0}, s3, 1
        v_xor_b32 v25, s{T0}, v24
        v_lshl_add_u32 v25, v25, 5, v5
        v_xor_b32 v26, 32, v25
        v_lshl_add_u32 v36, v4, 8, v25
        v_lshl_add_u32 v37, v4, 8, v26
        v_lshl_add_u32 v38, v24, 8, v25
        v_lshl_add_u32 v39, v24, 8, v26
        v_add_u32 v36, {WQ}, v36
        v_add_u32 v37, {WQ}, v37
        v_add_u32 v38, {WQ + 64 * 256}, v38
        v_add_u32 v39, {WQ + 64 * 256}, v39""")
        for i in range(5):
            e.need(vr(8 + i))
            e(f"v_lshlrev_b32 v{14 + 2 * i}, 16, v{8 + i}\nv_and_b32 v{15 + 2 * i}, 0xffff0000, v{8 + i}")
        e("""v_add_f32 v24, v14, v15
        v_add_f32 v25, v16, v17
        v_add_f32 v26, v18, v19
        v_add_f32 v27, v20, v21
        v_add_f32 v28, v22, v23
        v_add_f32 v24, v24, v25
        v_add_f32 v26, v26, v27
        v_add_f32 v24, v24, v28
        v_add_f32 v24, v24, v26""")
        self.allred("v_add_f32", 24, 25)
        e(f"v_mul_f32 v24, 0x{fbits(1 / 576):08x}, v24\nv_cmp_gt_u32 vcc, 32, v1")
        for i in range(10):
            e(f"v_sub_f32 v{26 + i}, v{14 + i}, v24")
        e("v_cndmask_b32 v34, 0, v34, vcc\nv_cndmask_b32 v35, 0, v35, vcc\nv_mul_f32 v8, v26, v26\nv_mul_f32 v9, v27, v27")
        for i in range(2, 10):
            e(f"v_fmac_f32 v{8 + (i & 1)}, v{26 + i}, v{26 + i}")
        e("v_add_f32 v8, v8, v9")
        self.allred("v_add_f32", 8, 9)
        e(f"v_mul_f32 v8, 0x{fbits(1 / 576):08x}, v8")
        self.bfround(24)
        self.bfround(8)
        e(f"v_add_f32 v8, 0x{fbits(1e-5):08x}, v8")
        self.bfround(8)
        e("v_sqrt_f32 v8, v8\ns_nop 0")
        self.bfround(8)
        e("v_rcp_f32 v8, v8")
        for i in range(10):
            e(f"v_sub_f32 v{14 + i}, v{14 + i}, v24")
        for i in range(5):
            e(f"v_cvt_pk_bf16_f32 v{26 + i}, v{14 + 2 * i}, v{15 + 2 * i}")
        for i in range(5):
            e(f"""v_lshlrev_b32 v{14 + 2 * i}, 16, v{26 + i}
            v_and_b32 v{15 + 2 * i}, 0xffff0000, v{26 + i}
            v_mul_f32 v{14 + 2 * i}, v{14 + 2 * i}, v8
            v_mul_f32 v{15 + 2 * i}, v{15 + 2 * i}, v8""")
        e(f"v_add_u32 v7, {XN}, v7")
        for i in range(5):
            e(f"v_cvt_pk_bf16_f32 v{26 + i}, v{14 + 2 * i}, v{15 + 2 * i}\nds_write_b32 v7, v{26 + i} offset:{256 * i}")
        sk = self.lab("nouk")
        e(f"""s_lshr_b32 s{T0}, s2, 7
        s_lshr_b32 s{T1}, s3, 1
        s_or_b32 s{T0}, s{T0}, s{T1}
        s_cbranch_scc1 {sk}
        s_lshl_b32 s{T0}, s{SL}, 1
        s_add_u32 s{T0}, s{T0}, s3
        s_lshl_b32 s{T0}, s{T0}, 19
        s_lshl_b32 s{T1}, s{HEAD}, 8
        s_add_u32 s{T0}, s{T0}, s{T1}
        v_lshlrev_b32 v8, 13, v2
        v_lshl_add_u32 v8, v3, 4, v8""")
        for tt in range(4):
            for s in range(4):
                e(f"buffer_load_dwordx4 {vr(128 + 16 * tt + 4 * s, 4)}, v8, {sr(SA, 4)}, s{T0} offen offset:{64 * s} nt")
            if tt < 3: e(f"s_add_u32 s{T0}, s{T0}, {16 * 8192}")
        e(f"{sk}:")
        e.forget()
        e(f"""s_mul_i32 s{T0}, s{SL}, 144
        s_add_u32 s{T0}, s{T0}, {XN}
        v_lshl_add_u32 v9, v3, 3, s{T0}
        s_waitcnt lgkmcnt(0)
        s_add_u32 s{TAG}, s{TAG}, 0x{TAG_STEP:08x}""")
        for i in range(5):
            e(f"ds_read_b64 {vr(24 + 2 * i, 2)}, v9 offset:{32 * i}")
        e(f"""v_mov_b32 v34, 0
        v_mov_b32 v35, 0
        v_mov_b32 v50, 0
        v_mov_b32 v51, 0
        v_mov_b32 v62, 0
        v_mov_b32 v63, 0
        v_mov_b32 v70, 0
        v_mov_b32 v71, s{TAG}
        v_cmp_gt_u32 vcc, 32, v1
        s_lshl_b32 s{T0}, s{HEAD}, 3
        s_add_u32 s{T0}, s{T0}, s{SL}
        s_lshl_b32 s{T0}, s{T0}, 2
        s_add_u32 s{T0}, s{T0}, s3
        s_lshl_b32 s{T0}, s{T0}, 8
        s_add_u32 s{T0}, s{T0}, {H0}
        s_waitcnt lgkmcnt(0)
        v_cndmask_b32 v32, 0, v32, vcc
        v_cndmask_b32 v33, 0, v33, vcc""")
        self.stamp(1)
        self.bar()
        self.stamp(2)
        for a in range(2):
            for i in range(4):
                e(f"ds_read_b64_tr_b16 {vr(40 + 12 * a + 2 * i, 2)}, v{36 + a} offset:{16 * 256 * i}")
            e(f"ds_read_b64_tr_b16 {vr(48 + 12 * a, 2)}, v{38 + a}")
        for a in range(2):
            f, acc = 40 + 12 * a, 72 + 4 * a
            for i in range(3):
                e.need(vr(f + 4 * i, 4))
                e(f"v_mfma_f32_16x16x32_bf16 {vr(acc, 4)}, {vr(24 + 4 * i, 4)}, {vr(f + 4 * i, 4)}, {vr(acc, 4) if i else 0}")
        e(f"""s_nop 4
        v_mov_b32 v68, v72
        s_nop 1
        v_mov_b32 v69, v76
        s_mov_b64 exec, 0xffff
        buffer_store_dwordx4 v[68:71], v6, {sr(SW, 4)}, s{T0} offen sc1
        s_mov_b64 exec, -1""")
        self.stamp(3)
        e("s_cmp_ge_u32 s2, 128\ns_cbranch_scc1 L_B")

    def role_R(self):
        e = self.e
        sk = self.lab("noa2")
        e(f"s_cmp_ge_u32 s3, 2\ns_cbranch_scc1 {sk}")
        e(f"""s_lshl_b32 s{T0}, s{HEAD}, 13
        s_add_u32 s{T0}, s{T0}, {H0}
        s_add_u32 s{T1}, s{T0}, 4096
        s_lshl_b32 s{T2}, s3, 8
        s_add_u32 s{T2}, s{T2}, {QS}
        v_lshlrev_b32 v8, 6, v3
        v_lshl_add_u32 v8, v2, 1, v8
        v_add_u32 v8, s{T2}, v8
        v_lshl_add_u32 v9, v3, 4, s{T2}
        v_lshlrev_b32 v10, 6, v2
        v_lshl_add_u32 v10, v3, 4, v10
        v_cmp_eq_u32 s[30:31], 1, v2
        v_mov_b32 v15, s{TAG}""")
        groups = [[(f"buffer_load_dwordx4 {vr(72 + 4 * p, 4)}, v6, {sr(SW, 4)}, s{T0 + (p >> 2)} offen offset:{1024 * (p & 3)} sc1", 75 + 4 * p)
                   for p in (2 * g, 2 * g + 1)] for g in range(4)]
        self.poll(groups, "h0")
        self.stamp(4)
        self.bar()
        for c in range(2):
            for p in (0, 2, 4, 6): e(f"v_add_f32 v{72 + 4 * p + c}, v{72 + 4 * p + c}, v{76 + 4 * p + c}")
        for c in range(2):
            for p in (0, 4): e(f"v_add_f32 v{72 + 4 * p + c}, v{72 + 4 * p + c}, v{80 + 4 * p + c}")
        e("""v_add_f32 v72, v72, v88
        v_add_f32 v73, v73, v89
        v_cvt_pk_bf16_f32 v72, v72, v73
        ds_write_b16 v8, v72
        ds_write_b16_d16_hi v8, v72 offset:32""")
        for s in range(4):
            e(f"ds_read_b128 {vr(104 + 4 * s, 4)}, v9 offset:{64 * s}")
        e(f"""s_lshl_b32 s{T0}, s{HEAD}, 2
        s_add_u32 s{T0}, s{T0}, s{SL}
        s_lshl_b32 s{T0}, s{T0}, 1
        s_add_u32 s{T0}, s{T0}, s3
        s_mul_i32 s{T0}, s{T0}, 192
        s_add_u32 s{T0}, s{T0}, {H1}
        s_mov_b32 s{T1}, 0x{KAPPA:08x}
        v_cmp_eq_u32 vcc, 2, v2""")
        for s in range(4):
            e.need(vr(104 + 4 * s, 4))
            for tt in range(4):
                c = "0" if s == 0 else vr(196 + 4 * tt, 4)
                e(f"v_mfma_f32_16x16x32_bf16 {vr(196 + 4 * tt, 4)}, {vr(128 + 16 * tt + 4 * s, 4)}, {vr(104 + 4 * s, 4)}, {c}")
        e("s_nop 4")
        for tt in range(4):
            for r in range(4): e(f"v_mul_f32 v{196 + 4 * tt + r}, s{T1}, v{196 + 4 * tt + r}")
            for r in range(2): e(f"v_cvt_pk_bf16_f32 v{72 + 2 * tt + r}, v{196 + 4 * tt + 2 * r}, v{197 + 4 * tt + 2 * r}")
        for k, (a, b, c) in enumerate(((72, 76, 75), (73, 77, 79), (74, 78, 78))):
            e(f"v_cndmask_b32 v{12 + k}, v{a}, v{b}, s[30:31]\nv_cndmask_b32 v{12 + k}, v{12 + k}, v{c}, vcc")
        e(f"""s_mov_b32 exec_lo, 0x00070007
        s_mov_b32 exec_hi, 0x00070007
        buffer_store_dwordx4 v[12:15], v10, {sr(SW, 4)}, s{T0} offen sc1
        s_mov_b64 exec, -1""")
        self.stamp(5)
        j2 = self.lab("join")
        e(f"s_branch {j2}\n{sk}:")
        self.bar()
        e(f"{j2}:")
        e.forget()
        e(f"""v_add_u32 v36, {WUV - WQ}, v36
        v_add_u32 v37, {WUV - WQ}, v37
        s_mov_b32 s{T0}, {ROW}
        v_mul_lo_u32 v8, v4, s{T0}
        s_lshl_b32 s{T1}, s3, 8
        v_add3_u32 v8, v8, s{T1}, v5
        v_add_u32 v9, {2 * SLOT}, v8
        v_bfe_u32 v24, v4, 1, 2
        v_xor_b32 v10, s3, v24
        v_lshl_add_u32 v10, v10, 5, v5
        v_lshl_add_u32 v10, v4, 7, v10
        v_add_u32 v10, {WOT}, v10""")
        for a in range(3):
            e(f"""v_add_u32 v25, {64 * a}, v1
            v_mul_u32_u24 v26, 2731, v25
            v_lshrrev_b32 v26, 16, v26
            v_mul_u32_u24 v27, 24, v26
            v_sub_u32 v27, v25, v27
            v_and_b32 v28, 6, v26
            v_xor_b32 v27, v27, v28
            v_mul_u32_u24 v26, 384, v26
            v_lshl_add_u32 v{11 + a}, v27, 4, v26""")
        e(f"""s_mul_i32 s{T0}, s3, 12288
        v_add3_u32 v14, v6, s{T0}, 12
        v_bfe_u32 v25, v1, 1, 2
        v_xor_b32 v25, 2, v25
        v_mul_u32_u24 v15, 384, v1
        v_lshl_add_u32 v15, v25, 5, v15
        v_add_u32 v15, {256 + 4}, v15
        s_lshl_b32 s{T0}, s3, 8
        s_add_u32 s{T0}, s{T0}, {WSC}
        v_and_b32 v25, 0x23, v1
        v_bfe_u32 v26, v1, 2, 2
        v_lshl_add_u32 v25, v26, 3, v25
        v_bfe_u32 v26, v1, 4, 1
        v_lshl_add_u32 v25, v26, 2, v25
        v_lshl_add_u32 v16, v25, 1, s{T0}
        v_lshl_add_u32 v17, v3, 4, s{T0}
        v_mul_u32_u24 v25, 384, v4
        v_add_u32 v25, v25, v5""")
        for a in range(3):
            e(f"""s_mul_i32 s{T0}, s3, 3
            s_add_u32 s{T0}, s{T0}, {a}
            s_and_b32 s{T1}, s{T0}, 3
            s_lshr_b32 s{T2}, s{T0}, 2
            s_lshl_b32 s{T2}, s{T2}, 7
            v_xor_b32 v26, s{T1}, v24
            v_lshl_add_u32 v26, v26, 5, v25
            v_add_u32 v{18 + a}, s{T2}, v26
            s_lshr_b32 s{T1}, s{T0}, 1
            s_mul_i32 s{T1}, s{T1}, 3
            s_and_b32 s{T2}, s{T0}, 1
            s_lshl_b32 s{T2}, s{T2}, 1
            v_bfe_u32 v26, v2, 1, 2
            v_add_u32 v27, s{T1}, v26
            v_lshrrev_b32 v28, 3, v2
            v_add_u32 v28, s{T2}, v28
            v_lshrrev_b32 v29, 2, v27
            v_lshlrev_b32 v29, 5, v29
            v_lshl_add_u32 v29, v28, 3, v29
            v_bfe_u32 v30, v27, 1, 1
            v_lshl_add_u32 v29, v30, 2, v29
            v_and_b32 v30, 1, v27
            v_lshl_add_u32 v29, v30, 1, v29
            v_and_b32 v30, 1, v2
            v_add_u32 v29, v29, v30
            v_lshlrev_b32 v29, 1, v29
            v_add_u32 v29, {CTXC}, v29
            v_cmp_gt_u32 vcc, 16, v27
            v_cmp_gt_u32 s[30:31], 3, v26
            v_mov_b32 v30, {DUMMY}
            s_and_b64 vcc, vcc, s[30:31]
            v_cndmask_b32 v{21 + a}, v30, v29, vcc""")
        e(f"""v_lshlrev_b32 v26, 2, v2
        v_add_u32 v26, {LSUM - 16}, v26
        v_lshrrev_b32 v27, 1, v2
        v_cmp_eq_u32 vcc, 2, v27
        v_mov_b32 v30, {DUMMY}
        s_cmp_eq_u32 s3, 3
        s_cselect_b64 s[30:31], -1, 0
        s_and_b64 vcc, vcc, s[30:31]
        v_cndmask_b32 v31, v30, v26, vcc
        v_lshlrev_b32 v32, 4, v3
        v_add_u32 v38, {CTXC}, v32
        v_add_u32 v39, {CTX}, v32
        s_sub_u32 s{T0}, s3, s{SL}
        s_and_b32 s{T0}, s{T0}, 3
        s_lshl_b32 s{T0}, s{T0}, 6
        s_add_u32 s{T0}, s{T0}, {CTX}
        v_lshrrev_b32 v26, 2, v2
        v_and_b32 v27, 3, v2
        v_lshlrev_b32 v27, 1, v27
        v_lshl_add_u32 v26, v26, 4, v27
        v_add_u32 v33, s{T0}, v26
        v_mov_b32 v25, {LSUM}""")
        self.out_addr(35, 26)
        e(f"""s_lshr_b32 s{T0}, s2, 2
        s_mul_i32 s{T1}, s{T0}, 43
        s_lshr_b32 s{T1}, s{T1}, 7
        s_mul_i32 s{T2}, s{T1}, 3
        s_sub_u32 s{T0}, s{T0}, s{T2}
        s_and_b32 s{T2}, s2, 3
        s_lshl_b32 s{T2}, s{T2}, 3
        s_lshl_b32 s30, s{T1}, 8
        s_mul_i32 s31, s{T0}, 96
        s_add_u32 s30, s30, s31
        s_add_u32 s30, s30, s{T2}
        s_lshl_b32 s31, s{T1}, 5
        s_add_u32 s31, s31, s{T2}
        s_add_u32 s31, s31, 1024
        s_add_u32 s{T2}, s30, 64
        s_cmp_eq_u32 s{T0}, 2
        s_cselect_b32 s31, s31, s{T2}
        v_lshrrev_b32 v34, 2, v5
        buffer_load_ushort v28, v34, {sr(SX, 4)}, s30 offen
        buffer_load_ushort v29, v34, {sr(SX, 4)}, s30 offen offset:32
        buffer_load_ushort v30, v34, {sr(SX, 4)}, s31 offen""")
        self.bar()
        self.stamp(6)
        for a in range(2):
            for i in range(8):
                e(f"ds_read_b64_tr_b16 {vr(40 + 16 * a + 2 * i, 2)}, v{36 + a} offset:{16 * 256 * i}")
        e("s_waitcnt lgkmcnt(0)")
        self.bar()
        def wo_reads(slot, base):
            out = []
            for k in range(9):
                for hf in range(2):
                    d = vr(base + 8 * k + 4 * (slot & 1) + 2 * hf, 2)
                    if k < 8:
                        out.append(f"ds_read_b64_tr_b16 {d}, v{8 + (slot >> 1)} offset:{(slot & 1) * SLOT + hf * 16 * ROW + 32 * k}")
                    else:
                        out.append(f"ds_read_b64_tr_b16 {d}, v10 offset:{slot * 4096 + hf * 2048}")
            return out
        for s in (0, 1):
            for r in wo_reads(s, 184): e(r)
        e(f"""s_lshl_b32 s{T0}, s{HEAD}, 2
        s_add_u32 s{T0}, s{T0}, s{SL}
        s_lshl_b32 s{T0}, s{T0}, 2
        s_add_u32 s{T0}, s{T0}, s3
        s_mul_i32 s{T0}, s{T0}, 12288
        s_add_u32 s{T0}, s{T0}, {H2}
        s_mul_i32 s{T1}, s3, 12288
        s_waitcnt lgkmcnt(0) vmcnt(0)""")
        self.bar()
        self.stamp(7)
        top, done = self.lab("h2_poll"), self.lab("h2_done")
        e(f"s_mov_b32 s{PEND}, 15\ns_mov_b32 s{ITER}, 0\n{top}:")
        for g in range(4):
            s_ = self.lab("sk")
            e(f"s_bitcmp1_b32 s{PEND}, {g}\ns_cbranch_scc0 {s_}\ns_add_u32 s{T2}, s{T0}, {3072 * g}")
            for a in range(3):
                e(f"s_add_u32 m0, s{T1}, {1024 * (3 * g + a)}\ns_nop 0")
                self.dma(11 + a, SW, T2, "sc1")
            e(f"{s_}:")
        e("s_waitcnt vmcnt(0)")
        for i in range(12):
            e(f"ds_read_b32 v{112 + i}, v14 offset:{1024 * i}")
        for g in range(4):
            e(f"s_waitcnt lgkmcnt({9 - 3 * g})\ns_mov_b64 {sr(MK, 2)}, exec")
            for a in range(3):
                e(f"v_cmp_eq_u32 vcc, s{TAG}, v{112 + 3 * g + a}\ns_and_b64 {sr(MK, 2)}, {sr(MK, 2)}, vcc")
            e(f"s_cmp_eq_u64 {sr(MK, 2)}, exec\ns_cselect_b32 s{T3}, {1 << g}, 0\ns_andn2_b32 s{PEND}, s{PEND}, s{T3}")
        e(f"""s_cbranch_scc0 {done}
        s_add_u32 s{ITER}, s{ITER}, 1
        s_cmp_lt_u32 s{ITER}, {POLL_MAX}
        s_cbranch_scc1 {top}
        {done}:""")
        e.forget()
        self.stamp(8)
        self.bar()
        self.stamp(9)
        e("ds_read_b32 v26, v15\nds_read_b32 v27, v15 offset:24576")
        red = [f"ds_read_b64_tr_b16 {vr(112 + 12 * ks + 4 * a + 2 * hf, 2)}, v{18 + a} offset:{(32 * ks + 16 * hf) * 384}"
               for ks in range(4) for a in range(3) for hf in range(2)]
        for r in red[:12]: e(r)
        e.need("v26", "v27")
        e("v_max_f32 v24, v26, v27")
        for i, r in enumerate((8, 4, 2, 1)):
            e(red[12 + 2 * i] + "\n" + red[13 + 2 * i])
            e(f"v_max_f32_dpp v24, v24, v24 row_ror:{r} row_mask:0xf bank_mask:0xf")
        for i, w in enumerate((16, 32)):
            e(f"v_mov_b32 v7, v24\n{red[20 + 2 * i]}\n{red[21 + 2 * i]}\nv_permlane{w}_swap_b32 v24, v7\nv_max_f32 v24, v24, v7")
        e("""v_sub_f32 v26, v26, v24
        v_sub_f32 v27, v27, v24
        v_exp_f32 v26, v26
        v_exp_f32 v27, v27
        s_nop 0
        v_cvt_pk_bf16_f32 v26, v26, v27
        ds_write_b16 v16, v26
        ds_write_b16_d16_hi v16, v26 offset:128""")
        for ks in range(4):
            e(f"ds_read_b128 {vr(160 + 4 * ks, 4)}, v17 offset:{64 * ks}")
        for ks in range(4):
            e.need(vr(160 + 4 * ks, 4), vr(112 + 12 * ks, 12))
            for a in range(3):
                c = "0" if ks == 0 else vr(76 + 4 * a, 4)
                e(f"v_mfma_f32_16x16x32_bf16 {vr(76 + 4 * a, 4)}, {vr(160 + 4 * ks, 4)}, {vr(112 + 12 * ks + 4 * a, 4)}, {c}")
        late = wo_reads(2, 112) + wo_reads(3, 112)
        e("s_nop 5\ns_mov_b64 exec, 0xffff")
        for a in range(3):
            e(f"v_cvt_pk_bf16_f32 v{88 + a}, v{76 + 4 * a}, v{76 + 4 * a}\nds_write_b16 v{21 + a}, v{88 + a}")
        e("ds_write_b32 v31, v80\ns_mov_b64 exec, -1\ns_waitcnt lgkmcnt(0)")
        self.bar()
        self.stamp(10)
        for ks in range(4):
            e(f"ds_read_b128 {vr(96 + 4 * ks, 4)}, v38 offset:{64 * ks}")
        e("ds_read_b64 v[26:27], v25")
        for r in late[:10]: e(r)
        for ks in range(4):
            e.need(vr(96 + 4 * ks, 4))
            for a in range(2):
                c = "0" if ks == 0 else vr(88 + 4 * a, 4)
                e(f"v_mfma_f32_16x16x32_bf16 {vr(88 + 4 * a, 4)}, {vr(96 + 4 * ks, 4)}, {vr(40 + 16 * a + 4 * ks, 4)}, {c}")
        e.need("v[26:27]")
        e("v_add_f32 v26, v26, v27\nv_rcp_f32 v26, v26")
        for r in late[10:14]: e(r)
        e("""s_nop 1
        s_mov_b64 exec, 0xffff
        v_mul_f32 v88, v88, v26
        v_mul_f32 v92, v92, v26
        v_cvt_pk_bf16_f32 v88, v88, v92
        ds_write_b16 v33, v88
        ds_write_b16_d16_hi v33, v88 offset:8
        s_mov_b64 exec, -1
        s_waitcnt lgkmcnt(0)""")
        self.bar()
        self.stamp(11)
        for ks in range(4):
            e(f"ds_read_b128 {vr(40 + 4 * ks, 4)}, v39 offset:{64 * ks}")
        rest = late[14:]
        e(f"v_mov_b32 v63, s{TAG}")
        for ks in range(4):
            for k in range(9):
                f = (184 if ks < 2 else 112) + 8 * k + 4 * (ks & 1)
                e.need(vr(40 + 4 * ks, 4), vr(f, 4))
                c = "0" if ks == 0 else vr(76 + 4 * k, 4)
                e(f"v_mfma_f32_16x16x32_bf16 {vr(76 + 4 * k, 4)}, {vr(40 + 4 * ks, 4)}, {vr(f, 4)}, {c}")
                for _ in range(2):
                    if rest: e(rest.pop(0))
        self.publish_out(76, 60, 35)
        self.stamp(12)
        e(f"""s_cmp_ge_u32 s2, 48
        s_cbranch_scc1 L_exit
        s_cmp_lg_u32 s3, 0
        s_cbranch_scc1 L_exit
        s_lshl_b32 s{T0}, s2, 14
        s_add_u32 s{T0}, s{T0}, {H3}
        s_add_u32 s{T1}, s{T0}, 4096
        s_add_u32 s{T2}, s{T0}, 8192
        s_add_u32 s{RID}, s{T0}, 12288""")
        so = [T0, T1, T2, RID]
        groups = [[(f"buffer_load_dwordx4 {vr(64 + 4 * i, 4)}, v6, {sr(SW, 4)}, s{so[i >> 2]} offen offset:{1024 * (i & 3)} sc1", 67 + 4 * i)
                   for i in (2 * g, 2 * g + 1)] for g in range(8)]
        self.srd(SA, P_OUT, 1152)
        e("v_lshlrev_b32 v28, 16, v28\nv_lshlrev_b32 v29, 16, v29\nv_lshlrev_b32 v30, 16, v30")
        self.poll(groups, "h3")
        self.stamp(13)
        for step in (1, 2, 4, 8):
            for i in range(0, 16, 2 * step):
                for c in range(3): e(f"v_add_f32 v{64 + 4 * i + c}, v{64 + 4 * i + c}, v{64 + 4 * (i + step) + c}")
        for r in (4, 8):
            for c in range(3): e(f"v_add_f32_dpp v{64 + c}, v{64 + c}, v{64 + c} row_ror:{r} row_mask:0xf bank_mask:0xf")
        for w in (16, 32):
            for c in range(3): e(f"v_mov_b32 v{68 + c}, v{64 + c}")
            for c in range(3): e(f"v_permlane{w}_swap_b32 v{64 + c}, v{68 + c}")
            for c in range(3): e(f"v_add_f32 v{64 + c}, v{64 + c}, v{68 + c}")
        for c in range(3): e(f"v_add_f32 v{64 + c}, v{64 + c}, v{28 + c}")
        e(f"""v_cvt_pk_bf16_f32 v64, v64, v65
        v_cvt_pk_bf16_f32 v66, v66, v66
        s_mov_b64 exec, 15
        buffer_store_short v64, v34, {sr(SA, 4)}, s30 offen
        buffer_store_short_d16_hi v64, v34, {sr(SA, 4)}, s30 offen offset:32
        buffer_store_short v66, v34, {sr(SA, 4)}, s31 offen
        s_mov_b64 exec, 1
        s_cmp_lg_u32 s2, 0
        s_cbranch_scc1 L_exit
        v_mov_b32 v7, s{TAG}
        v_mov_b32 v8, 0
        buffer_store_dword v7, v8, {sr(SW, 4)}, 0 offen sc1
        s_branch L_exit""")

    def role_B(self):
        e, o = self.e, self.o
        e("L_B:")
        e.forget()
        e(f"""s_and_b32 s{T0}, s3, 1
        s_lshr_b32 s{T1}, s3, 1
        v_and_b32 v24, 7, v2
        v_lshrrev_b32 v25, 3, v2
        v_lshl_add_u32 v24, v24, 1, v25
        v_mul_u32_u24 v24, {CKV_S}, v24
        s_lshl_b32 s{T2}, s{T1}, 9
        v_lshl_add_u32 v8, v3, 3, v24
        v_add_u32 v8, s{T2}, v8
        v_and_b32 v24, 7, v4
        v_lshrrev_b32 v25, 3, v4
        v_lshl_add_u32 v24, v24, 1, v25
        v_mul_u32_u24 v24, {CKV_S}, v24
        v_add3_u32 v9, v24, v5, s{T2}
        s_lshl_b32 s{T0}, s{T0}, 4
        v_add_u32 v24, s{T0}, v2
        v_mul_u32_u24 v10, 1536, v24
        v_lshl_add_u32 v10, v3, 4, v10
        s_mov_b32 s{T2}, 196608
        v_mul_lo_u32 v11, v24, s{T2}
        v_lshl_add_u32 v11, v3, 4, v11
        s_mul_i32 s30, s{T1}, 768
        s_add_u32 s30, s30, {H1}
        s_mul_i32 s31, s{T1}, 98304
        s_mul_i32 s{T2}, s{RID}, 384
        s_add_u32 s31, s31, s{T2}
        s_add_u32 s31, s31, {H2}
        s_lshl_b32 s{T0}, s3, 12
        s_add_u32 s{T0}, s{T0}, {WQ}
        v_add_u32 v12, s{T0}, v6
        s_xor_b32 s{T0}, s3, 2
        s_lshl_b32 s{T0}, s{T0}, 12
        s_add_u32 s{T0}, s{T0}, {WQ}
        v_add_u32 v13, s{T0}, v6""")
        e(f"""s_lshl_b32 s{T1}, s3, 8
        v_mul_u32_u24 v14, {ROW}, v4
        v_add3_u32 v14, v14, s{T1}, v5
        v_add_u32 v14, {GU}, v14
        v_and_b32 v24, 3, v4
        v_mul_u32_u24 v15, {ROW}, v24
        v_add3_u32 v15, v15, s{T1}, v5
        v_add_u32 v15, {GU + 32 * ROW}, v15
        v_bfe_u32 v25, v4, 1, 2
        v_xor_b32 v25, s3, v25
        v_lshl_add_u32 v25, v25, 5, v5
        v_lshl_add_u32 v16, v4, 7, v25
        v_lshrrev_b32 v25, 1, v24
        v_xor_b32 v25, s3, v25
        v_lshl_add_u32 v25, v25, 5, v5
        v_lshl_add_u32 v17, v24, 7, v25
        s_and_b32 s{SL}, s{RID}, 15
        s_lshr_b32 s{HEAD}, s{RID}, 4
        s_mul_i32 s{T0}, s{SL}, 72
        s_add_u32 s{T0}, s{T0}, {XN}
        v_lshl_add_u32 v24, v3, 3, s{T0}
        v_mov_b32 v25, s{T0}
        ds_read_b64 v[28:29], v24
        ds_read_b64 v[30:31], v24 offset:32
        ds_read_b64 v[36:37], v25 offset:64""")
        for i in range(3):
            if i < 2:
                e(f"""s_lshl_b32 s{T0}, s3, 7
                s_add_u32 s{T0}, s{T0}, {64 * i}
                v_add_u32 v24, s{T0}, v1""")
            else:
                e(f"""s_lshl_b32 s{T0}, s3, 4
                s_add_u32 s{T0}, s{T0}, 512
                v_add_u32 v24, s{T0}, v2""")
            e(f"""v_mul_u32_u24 v25, 1821, v24
            v_lshrrev_b32 v25, 16, v25
            v_mul_u32_u24 v32, 36, v25
            v_sub_u32 v24, v24, v32
            v_mul_u32_u24 v25, 10240, v25
            v_lshl_add_u32 v{18 + i}, v24, 4, v25""")
        e(f"""v_and_b32 v24, 3, v1
        v_bfe_u32 v25, v1, 2, 2
        v_lshl_add_u32 v24, v25, 3, v24
        v_bfe_u32 v25, v1, 4, 1
        v_lshl_add_u32 v24, v25, 2, v24
        v_cmp_gt_u32 vcc, 32, v1
        v_lshlrev_b32 v22, 4, v3
        v_add_u32 v22, {HV}, v22
        v_cndmask_b32 v24, v1, v24, vcc
        v_lshlrev_b32 v21, 1, v24
        v_add_u32 v21, {HV}, v21
        v_cmp_gt_u32 vcc, 16, v1
        v_mov_b32 v24, {HV + 72}
        v_mov_b32 v25, {HV + 64}
        v_cndmask_b32 v23, v24, v25, vcc
        s_waitcnt lgkmcnt(0)
        v_cndmask_b32 v36, 0, v36, vcc
        v_cndmask_b32 v37, 0, v37, vcc
        v_mov_b32 v38, 0
        v_mov_b32 v39, 0""")
        self.out_addr(35, 24)
        self.bar()
        self.stamp(4)
        for t in range(4):
            for s in range(8):
                for hf in range(2):
                    e(f"ds_read_b64 {vr(128 + 4 * (8 * t + s) + 2 * hf, 2)}, v8 offset:{t * 16 * CKV_S + 64 * s + 32 * hf}")
        groups = [[(f"buffer_load_dwordx4 {vr(80 + 12 * g + 4 * n, 4)}, v10, {sr(SW, 4)}, s30 offen offset:{192 * g + 64 * n} sc1", 83 + 12 * g + 4 * n)
                   for n in range(3)] for g in range(4)]
        self.poll(groups, "h1")
        for g in range(4):
            e(f"v_mov_b32 v{83 + 12 * g}, v{88 + 12 * g}\nv_mov_b32 v{87 + 12 * g}, v{89 + 12 * g}")
        e("s_waitcnt lgkmcnt(0)")
        self.stamp(5)
        self.bar()
        for s in range(8):
            qd = 80 + 12 * (s >> 1) + 4 * (s & 1)
            for t in range(4):
                c = "0" if s == 0 else vr(64 + 4 * t, 4)
                e(f"v_mfma_f32_16x16x32_bf16 {vr(64 + 4 * t, 4)}, {vr(128 + 4 * (8 * t + s), 4)}, {vr(qd, 4)}, {c}")
        for g in range(4):
            e(f"v_mov_b32 v{83 + 12 * g}, s{TAG}")
        e("s_nop 0")
        for t in range(4):
            e(f"ds_write_b128 v12, {vr(64 + 4 * t, 4)} offset:{1024 * t}\nv_mov_b32 v{87 + 12 * t}, s{TAG}")
        e("s_waitcnt lgkmcnt(0)")
        self.bar()
        self.stamp(6)
        for t in range(4):
            e(f"ds_read_b128 {vr(48 + 4 * t, 4)}, v13 offset:{1024 * t}")
        pv = [f"ds_read_b64_tr_b16 {vr(128 + 8 * tc + 4 * u + 2 * hf, 2)}, v9 offset:{(2 * u + hf) * 16 * CKV_S + 32 * tc}"
              for tc in range(16) for u in range(2) for hf in range(2)]
        def rd(n=1):
            for _ in range(n):
                if pv: e(pv.pop(0))
        rd(8)
        for t in range(4):
            e.need(vr(48 + 4 * t, 4))
            for r in range(4): e(f"v_add_f32 v{64 + 4 * t + r}, v{64 + 4 * t + r}, v{48 + 4 * t + r}")
            rd(1)
        e("v_max3_f32 v32, v64, v65, v66\nv_max3_f32 v33, v67, v68, v69")
        rd(1)
        e("v_max3_f32 v32, v32, v70, v71\nv_max3_f32 v33, v33, v72, v73")
        rd(1)
        e("v_max3_f32 v32, v32, v74, v75\nv_max3_f32 v33, v33, v76, v77")
        rd(1)
        e("v_max3_f32 v32, v32, v78, v79\nv_max_f32 v32, v32, v33")
        for w in (16, 32):
            e("v_mov_b32 v33, v32"); rd(2)
            e(f"v_permlane{w}_swap_b32 v32, v33\nv_max_f32 v32, v32, v33")
        for r in range(16):
            e(f"v_sub_f32 v{64 + r}, v{64 + r}, v32")
            if r & 1: rd(1)
        for r in range(16):
            e(f"v_exp_f32 v{64 + r}, v{64 + r}"); rd(1)
        for r in range(8):
            e(f"v_cvt_pk_bf16_f32 v{40 + r}, v{64 + 2 * r}, v{65 + 2 * r}")
        fill = []
        for r in range(8): fill.append(f"v_add_f32 v{64 + r}, v{64 + r}, v{72 + r}")
        for r in range(4): fill.append(f"v_add_f32 v{64 + r}, v{64 + r}, v{68 + r}")
        fill += ["v_add_f32 v64, v64, v66", "v_add_f32 v65, v65, v67", "v_add_f32 v33, v64, v65"]
        for w in (16, 32):
            fill += ["v_mov_b32 v34, v33", "s_nop 1", f"v_permlane{w}_swap_b32 v33, v34", "v_add_f32 v33, v33, v34"]
        fill += ["v_cvt_pk_bf16_f32 v34, v33, v33", "v_lshlrev_b32 v34, 16, v34", "v_sub_f32 v34, v33, v34",
                 "v_cvt_pk_bf16_f32 v102, v33, v34", "v_mov_b32 v101, v32", "v_mov_b32 v125, v32", "v_mov_b32 v126, v102"]
        slot_reg = lambda cq, s: 80 + 24 * cq + 4 * (s // 3) + s % 3
        ready_after = {1: [0], 2: [1], 4: [2], 5: [3], 7: [4, 5]}
        e(f"s_add_u32 s{T0}, s31, 49152")
        def finish(tc):
            cq, k = tc >> 3, tc & 7
            acc = 48 + 4 * (tc & 3)
            e(f"v_cvt_pk_bf16_f32 v{slot_reg(cq, 2 * k)}, v{acc}, v{acc + 1}")
            e(f"v_cvt_pk_bf16_f32 v{slot_reg(cq, 2 * k + 1)}, v{acc + 2}, v{acc + 3}")
            for n in ready_after.get(k, []):
                e(f"buffer_store_dwordx4 {vr(80 + 24 * cq + 4 * n, 4)}, v11, {sr(SW, 4)}, s{31 if cq == 0 else T0} offen offset:{64 * n} sc1")
        for tc in range(16):
            acc = 48 + 4 * (tc & 3)
            e.need(vr(128 + 8 * tc, 8))
            e(f"v_mfma_f32_16x16x32_bf16 {vr(acc, 4)}, {vr(128 + 8 * tc, 4)}, v[40:43], 0")
            rd(2)
            for _ in range(2):
                if fill: e(fill.pop(0))
            e(f"v_mfma_f32_16x16x32_bf16 {vr(acc, 4)}, {vr(132 + 8 * tc, 4)}, v[44:47], {vr(acc, 4)}")
            for _ in range(2):
                if fill: e(fill.pop(0))
            if tc >= 2:
                if not fill and not pv: e("s_nop 1")
                finish(tc - 2)
        assert not fill and not pv
        e("s_nop 1")
        finish(14)
        e("s_nop 3")
        finish(15)
        self.stamp(7)
        for k in range(9):
            e(f"v_mov_b32 v{134 + 8 * k}, 0\nv_mov_b32 v{135 + 8 * k}, 0")
        self.bar()
        self.bar()
        self.stamp(8)
        jobs = []
        for mat in range(2):
            for k in range(9):
                acc, f = 40 + 36 * mat + 4 * k, 128 + 8 * ((9 * mat + k) % 6)
                if k < 8: jobs.append((acc, f, 14, mat * GU_M + 32 * k, 15, mat * GU_M + 32 * k, 16 * ROW))
                else: jobs.append((acc, f, 16, GUT + mat * 5120, 17, GUT + mat * 5120 + 4096, 2048))
        self.gemv36(jobs, 28, 36)
        e(f"""s_mul_i32 s{T0}, s{HEAD}, 163840
        s_mul_i32 s{T1}, s{SL}, 640
        s_add_u32 s{T0}, s{T0}, s{T1}
        s_add_u32 s{T0}, s{T0}, {HM}
        v_mov_b32 v114, 0
        v_mov_b32 v115, s{TAG}
        v_mov_b32 v118, 0
        v_mov_b32 v119, s{TAG}
        v_mov_b32 v122, 0
        v_mov_b32 v123, s{TAG}""")
        for i in range(2):
            for mat in range(2):
                b = 40 + 36 * mat + 16 * i
                d = 112 + 4 * i + mat
                self.sel3(d, b, b + 4, b + 8)
                e(f"v_cndmask_b32 v{d}, v{d}, v{b + 12}, {sr(M3, 2)}")
            e(f"buffer_store_dwordx4 {vr(112 + 4 * i, 4)}, v{18 + i}, {sr(SW, 4)}, s{T0} offen sc1")
        e(f"""v_mov_b32 v120, v72
        v_mov_b32 v121, v108
        s_mov_b64 exec, 0xffff
        buffer_store_dwordx4 v[120:123], v20, {sr(SW, 4)}, s{T0} offen sc1
        s_mov_b64 exec, -1
        v_add_u32 v14, {DN - GU}, v14
        v_add_u32 v15, {DN - GU}, v15
        v_mov_b32 v27, s{TAG}""")
        self.stamp(9)
        sk = self.lab("noh")
        e(f"""s_cmp_lg_u32 s3, 0
        s_cbranch_scc1 {sk}
        s_mul_i32 s{T0}, s{RID}, 10240
        s_add_u32 s{T0}, s{T0}, {HM}
        s_add_u32 s{T1}, s{T0}, 3840
        s_add_u32 s{T2}, s{T0}, 7680
        s_mov_b32 exec_hi, 15""")
        groups = [[(f"buffer_load_dwordx4 {vr(40 + 4 * p, 4)}, v6, {sr(SW, 4)}, s{T0 + p // 6} offen offset:{640 * (p % 6)} sc1", 43 + 4 * p)
                   for p in range(4 * g, 4 * g + 4)] for g in range(4)]
        self.poll(groups, "hm")
        self.stamp(10)
        for step in (1, 2, 4, 8):
            for p in range(0, 16, 2 * step):
                for c in range(2): e(f"v_add_f32 v{40 + 4 * p + c}, v{40 + 4 * p + c}, v{40 + 4 * (p + step) + c}")
        e(f"""v_cvt_pk_bf16_f32 v40, v40, v41
        v_lshlrev_b32 v41, 16, v40
        v_and_b32 v40, 0xffff0000, v40
        v_mul_f32 v41, 0x{LOG2E | 0x80000000:08x}, v41
        v_exp_f32 v41, v41
        s_nop 0
        v_add_f32 v41, 1.0, v41
        v_rcp_f32 v41, v41
        s_nop 0
        v_cvt_pk_bf16_f32 v41, v41, v41
        v_lshlrev_b32 v41, 16, v41
        v_mul_f32 v40, v40, v41
        v_cvt_pk_bf16_f32 v40, v40, v40
        ds_write_b16 v21, v40
        s_mov_b32 exec_lo, 0
        s_mov_b32 exec_hi, 0xf0
        v_mov_b32 v40, 0
        ds_write_b16 v21, v40
        s_mov_b64 exec, -1
        s_waitcnt lgkmcnt(0)
        {sk}:""")
        e.forget()
        self.bar()
        self.stamp(11)
        e("ds_read_b128 v[28:31], v22\nds_read_b64 v[36:37], v23")
        jobs = []
        for k in range(9):
            acc, f = 40 + 4 * k, 128 + 8 * k
            if k < 8: jobs.append((acc, f, 14, 32 * k, 15, 32 * k, 16 * ROW))
            else: jobs.append((acc, f, 16, DNT, 17, DNT + 4096, 2048))
        self.gemv36(jobs, 28, 36)
        self.publish_out(40, 24, 35)
        self.stamp(12)
        e("s_branch L_exit")

    def loader(self):
        e, o = self.e, self.o
        LR, SO, L = 30, 31, 57
        e("L_loader:")
        e.forget()
        e(f"""s_sub_u32 s{L}, s3, 4
        s_lshl_b32 s{T0}, s{L}, 2
        v_add_u32 v7, s{T0}, v3
        v_lshlrev_b32 v7, 1, v7
        v_xor_b32 v7, v7, v2
        v_lshlrev_b32 v7, 4, v7
        v_lshl_add_u32 v7, v3, 13, v7
        s_mul_i32 s{SO}, s{SL}, 72
        s_add_u32 s{SO}, s{SO}, s{T0}
        s_lshl_b32 s{SO}, s{SO}, 13
        s_lshl_b32 s{T1}, s{HEAD}, 8
        s_add_u32 s{SO}, s{SO}, s{T1}
        s_lshl_b32 s{LR}, s{L}, 10
        s_add_u32 s{LR}, s{LR}, {WQ}
        s_waitcnt lgkmcnt(0)""")
        self.srd(SA, P_WQ, NBYTES["wq"])
        self.dma_run(9, 7, SA, SO, 8 * 8192, LR, 2048)
        if o.diag: self.srd(SW, P_WS, 256 << 20)
        e(f"""v_lshrrev_b32 v8, 3, v1
        v_and_b32 v9, 6, v8
        v_and_b32 v10, 7, v1
        v_xor_b32 v9, v9, v10
        v_lshlrev_b32 v9, 4, v9
        v_add_u32 v9, 1024, v9
        v_mul_u32_u24 v10, 1152, v8
        v_add_u32 v10, v10, v9
        v_mul_u32_u24 v11, 9216, v8
        v_add_u32 v11, v11, v9
        s_cmp_ge_u32 s2, 128
        s_cbranch_scc1 L_loadB""")
        self.srd(SB, P_WUV, NBYTES["wuv"])
        self.srd(SC, P_WO, NBYTES["wo"])
        e(f"""s_lshl_b32 s{SO}, s{SL}, 7
        s_add_u32 s{SO}, s{SO}, s{T0}
        s_lshl_b32 s{SO}, s{SO}, 13
        s_add_u32 s{SO}, s{SO}, s{T1}
        s_lshl_b32 s{LR}, s{L}, 10
        s_add_u32 s{LR}, s{LR}, {WUV}
        s_waitcnt vmcnt(0)""")
        self.stamp(1)
        self.bar()
        self.bar()
        self.stamp(2)
        self.dma_run(16, 7, SB, SO, 8 * 8192, LR, 2048)
        def slot(k):
            e(f"""s_add_u32 s{T2}, s{SL}, {k}
            s_and_b32 s{T2}, s{T2}, 3
            s_lshl_b32 s{T2}, s{T2}, 1
            s_add_u32 s{T2}, s{T2}, s{L}
            s_lshl_b32 s{T3}, s{HEAD}, 3
            s_add_u32 s{T2}, s{T2}, s{T3}
            s_mul_i32 s{SO}, s{T2}, {16 * 1152}
            s_mov_b32 s{T2}, s{SO}
            s_mul_i32 s{LR}, s{L}, {16 * ROW}
            s_add_u32 s{LR}, s{LR}, {k * SLOT}""")
            self.dma_run(16, 6, SC, SO, 1152, LR, ROW)
            e(f"s_lshl_b32 s{LR}, s{L}, 11\ns_add_u32 s{LR}, s{LR}, {WOT + k * 4096}")
            self.dma_run(2, 10, SC, T2, 8 * 1152, LR, 1024)
        slot(0)
        e("s_waitcnt vmcnt(18)")
        self.stamp(3)
        self.bar()
        slot(1)
        slot(2)
        e("s_waitcnt vmcnt(18)")
        self.stamp(4)
        self.bar()
        slot(3)
        e("s_waitcnt vmcnt(0)")
        self.stamp(5)
        self.bar()
        e("s_branch L_exit")
        e("L_loadB:")
        self.srd(SB, P_CKV, NBYTES["ckv"])
        e(f"""s_lshl_b32 s{SO}, s{RID}, 6
        s_add_u32 s{SO}, s{SO}, s{L}
        s_lshl_b32 s{SO}, s{SO}, 10
        s_mul_i32 s{LR}, s{L}, {CKV_S}""")
        self.dma_run(16, 6, SB, SO, 2048, LR, 2 * CKV_S)
        e(f"""s_cmp_eq_u32 s{L}, 0
        s_cselect_b32 s{SC}, s{P_WG}, s{P_WU}
        s_cselect_b32 s{SC + 1}, s{P_WG + 1}, s{P_WU + 1}
        s_mov_b32 s{SC + 2}, {NBYTES["wg"]}
        s_mov_b32 s{SC + 3}, 0x20000
        s_waitcnt vmcnt(16)""")
        self.stamp(1)
        self.bar()
        self.dma_run(16, 6, SB, SO, 2048, LR, 2 * CKV_S)
        e(f"""s_and_b32 s{SL}, s{RID}, 15
        s_lshr_b32 s{HEAD}, s{RID}, 4
        s_mul_i32 s{SO}, s{SL}, {36 * 9216}
        s_mul_i32 s{T0}, s{HEAD}, 1152
        s_add_u32 s{SO}, s{SO}, s{T0}
        s_mov_b32 s{T2}, s{SO}
        s_mul_i32 s{LR}, s{L}, {GU_M}
        s_add_u32 s{LR}, s{LR}, {GU}""")
        self.dma_run(o.pre, 6, SC, SO, 9216, LR, ROW)
        self.srd(SA, P_WD, NBYTES["wd"])
        e(f"s_waitcnt vmcnt({o.pre})")
        self.stamp(2)
        self.bar()
        self.bar()
        self.stamp(3)
        self.dma_run(o.mid, 6, SC, SO, 9216, LR, ROW)
        self.bar()
        self.dma_run(36 - o.pre - o.mid, 6, SC, SO, 9216, LR, ROW)
        self.stamp(4)
        self.bar()
        e(f"s_mul_i32 s{LR}, s{L}, 5120")
        self.dma_run(4, 11, SC, T2, 8 * 9216, LR, 1024)
        e("s_mov_b32 exec_hi, 0")
        self.dma_run(1, 11, SC, T2, 8 * 9216, LR, 1024)
        e(f"""s_mov_b32 exec_hi, -1
        s_mul_i32 s{T0}, s{RID}, 36
        s_mul_i32 s{T2}, s{T0}, 1152
        s_mul_i32 s{T1}, s{L}, 1152
        s_add_u32 s{SO}, s{T2}, s{T1}
        s_mul_i32 s{LR}, s{L}, {ROW}
        s_add_u32 s{LR}, s{LR}, {DN}""")
        self.dma_run(o.dn1, 6, SA, SO, 2 * 1152, LR, 2 * ROW)
        e(f"s_waitcnt vmcnt({o.dn1})")
        self.stamp(5)
        self.bar()
        self.dma_run(18 - o.dn1, 6, SA, SO, 2 * 1152, LR, 2 * ROW)
        e(f"""s_mul_i32 s{T1}, s{L}, {16 * 1152}
        s_add_u32 s{T2}, s{T2}, s{T1}
        s_lshl_b32 s{LR}, s{L}, 11
        s_add_u32 s{LR}, s{LR}, {DNT}""")
        self.dma_run(2, 10, SA, T2, 8 * 1152, LR, 1024)
        sk = self.lab("dnt")
        e(f"s_cmp_eq_u32 s{L}, 0\ns_cbranch_scc1 {sk}\ns_mov_b32 exec_hi, 0")
        self.dma_run(1, 10, SA, T2, 8 * 1152, LR, 1024)
        e(f"s_mov_b32 exec_hi, -1\n{sk}:\ns_waitcnt vmcnt(0)")
        self.stamp(6)
        self.bar()

    def epilogue(self):
        e = self.e
        e("L_exit:")
        if self.o.diag:
            self.stamp(15)
            e(f"""s_mov_b64 exec, -1
            s_lshl_b32 s{T0}, s2, 3
            s_add_u32 s{T0}, s{T0}, s3
            s_lshl_b32 s{T0}, s{T0}, 7
            s_add_u32 s{T0}, s{T0}, {STAMP_OFF}
            v_mov_b32 v1, 0""")
            for j in range(8):
                for k in range(4): e(f"v_mov_b32 v{4 + k}, s{STAMP0 + 4 * j + k}")
                e(f"buffer_store_dwordx4 v[4:7], v1, {sr(SW, 4)}, s{T0} offen offset:{16 * j}\ns_nop 1")
        e("L_end:\ns_endpgm")

    def build(self):
        if self.o.diag:
            for i in range(32): self.e(f"s_mov_b32 s{STAMP0 + i}, 0")
        self.prologue()
        self.compute_common()
        self.role_R()
        self.role_B()
        self.loader()
        self.epilogue()
        errs = check_hazards(self.e.l)
        for x in errs: print("HAZARD", x, file=sys.stderr)
        return single(self.e.text(), 256, 384, LDS_BYTES, 256, 102, 256), errs

def options(argv=None):
    p = argparse.ArgumentParser()
    p.add_argument("-o", default="k.s")
    p.add_argument("--diag", action="store_true")
    p.add_argument("--pre", type=int, default=0)
    p.add_argument("--mid", type=int, default=12)
    p.add_argument("--dn1", type=int, default=12)
    return p.parse_args(argv)

if __name__ == "__main__":
    assert all((g * 2731) >> 16 == g // 24 for g in range(192))
    assert all((f * 1821) >> 16 == f // 36 for f in range(576))
    assert all((u * 43) >> 7 == u // 3 for u in range(32))
    o = options()
    s, errs = G(o).build()
    open(o.o, "w").write(s)
    sys.exit(1 if errs else 0)
```
